```python
import torch

def _softmax(x, axis=-1):
    return torch.softmax(x, dim=axis)

def _gelu(x):
    return torch.nn.functional.gelu(x, approximate='tanh')

def _silu(x):
    return torch.nn.functional.silu(x)

def _sigmoid(x):
    return torch.sigmoid(x)

def _layernorm(x, axis=-1, eps=1e-05):
    m = x.mean(dim=axis, keepdim=True)
    v = x.var(dim=axis, keepdim=True, unbiased=False)
    return (x - m) / torch.sqrt(v + eps)

def _scatter_add(tgt, idx, src, axis=0):
    return tgt.clone().index_add_(axis, idx, src)

def _segment_sum(src, seg, n):
    out = torch.zeros((n,) + src.shape[1:], dtype=src.dtype)
    return out.index_add_(0, seg, src)

def _pad(x, pw):
    flat = tuple((v for pair in reversed(pw) for v in pair))
    return torch.nn.functional.pad(x, flat)
kernel_name = 'adaLN_cond__sliding_block_cached__mixer_gmlp__prompt'

def setup_inputs():

    _w = lambda a: (lambda t: t.to(torch.bfloat16) if t.is_floating_point() else t)(torch.as_tensor(a))

    def _A_setup():
        B, Sq, D = (1, 2048, 512)
        Hq, Hkv, Sk, Dh = (32, 8, 2048, 128)
        assert Hq % Hkv == 0, (Hq, Hkv)
        return {'x': _w((lambda *s: torch.randn(*s, dtype=torch.bfloat16) * 0.1)(B, Sq, D)), 'k_cache': _w((lambda *s: torch.randn(*s, dtype=torch.bfloat16) * 0.8)(B, Hkv, Sk, Dh)), 'v_cache': _w((lambda *s: torch.randn(*s, dtype=torch.bfloat16) * 1.6)(B, Hkv, Sk, Dh)), 'wq': _w((lambda *s: torch.randn(*s, dtype=torch.bfloat16) * 0.8)(D, Hq * Dh) * D ** (-0.5)), 'wo': _w((lambda *s: torch.randn(*s, dtype=torch.bfloat16) * 1.6)(Hq * Dh, D) * (Hq * Dh) ** (-0.5))}
    _A_in = _A_setup()

    def _B_setup():
        B, S, D, F = (1, 2048, 512, 1792)
        Fh = F // 2
        return {'x': _w((lambda *s: torch.randn(*s, dtype=torch.bfloat16) * 0.1)(B, S, D)), 'w_in': _w((lambda *s: torch.randn(*s, dtype=torch.bfloat16) * 1.6)(D, 2 * Fh)), 'w_sp': _w(0.01 * (lambda *s: torch.randn(*s, dtype=torch.bfloat16) * 1.6)(S, S)), 'b_sp': _w(1.0 + 0.01 * (lambda *s: torch.randn(*s, dtype=torch.bfloat16) * 0.2)(S)), 'w_out': _w((lambda *s: torch.randn(*s, dtype=torch.bfloat16) * 0.2)(Fh, D))}
    _B_in = _B_setup()
    return {'A_x': _A_in['x'], 'A_k_cache': _A_in['k_cache'], 'A_v_cache': _A_in['v_cache'], 'A_wq': _A_in['wq'], 'A_wo': _A_in['wo'], 'B_x': _B_in['x'], 'B_w_in': _B_in['w_in'], 'B_w_sp': _B_in['w_sp'], 'B_b_sp': _B_in['b_sp'], 'B_w_out': _B_in['w_out'], 'c': _w((lambda *s: torch.randn(*s, dtype=torch.bfloat16) * 0.8)(1, 512) * 8.0), 'w_mod': _w((lambda *s: torch.randn(*s, dtype=torch.bfloat16) * 0.8)(512, 6 * 512) * 512 ** (-0.5) * 8.0)}

def reference(A_x, A_k_cache, A_v_cache, A_wq, A_wo, B_x, B_w_in, B_w_sp, B_b_sp, B_w_out, c, w_mod):

    def _A_ref(x, k_cache, v_cache, wq, wo):
        B, Sq, D = x.shape
        Hq, Dh = (32, 128)
        Hkv, Sk = (k_cache.shape[1], k_cache.shape[2])
        W = min(4096, max(256, Sk // 4))
        rep = Hq // Hkv
        q = (lambda x, *d: x.permute(*d))((x @ wq).reshape(B, Sq, Hq, Dh), 0, 2, 1, 3)
        k = (lambda x, n, axis: torch.repeat_interleave(x, n, dim=axis))(k_cache[:, :, Sk - W:, :], rep, axis=1)
        v = (lambda x, n, axis: torch.repeat_interleave(x, n, dim=axis))(v_cache[:, :, Sk - W:, :], rep, axis=1)
        scores = torch.einsum('bhqd,bhkd->bhqk', q, k) * Dh ** (-0.5)
        p = _softmax(scores, axis=-1)
        o = torch.einsum('bhqk,bhkd->bhqd', p, v)
        return (lambda x, *d: x.permute(*d))(o, 0, 2, 1, 3).reshape(B, Sq, Hq * Dh) @ wo

    def _B_ref(x, w_in, w_sp, b_sp, w_out):
        B, S, D = x.shape
        F = w_in.shape[-1]
        Fh = F // 2
        z = _gelu(torch.einsum('bsd,df->bsf', x, w_in))
        z1 = z[..., :Fh].clone()
        z2 = _layernorm(z[..., Fh:], axis=-1)
        g = torch.einsum('ts,bsf->btf', w_sp, z2) + b_sp[None, :, None]
        return torch.einsum('bsf,fd->bsd', z1 * g, w_out)
    x = A_x
    mod = (_silu(c) @ w_mod).reshape(c.shape[0], 6, 1, -1)
    sa, ca, ga, sb, cb, gb = (mod[:, 0].clone(), mod[:, 1].clone(), mod[:, 2].clone(), mod[:, 3].clone(), mod[:, 4].clone(), mod[:, 5].clone())
    h = _layernorm(x, axis=-1) * (1 + ca) + sa
    x = x + ga * _A_ref(h, A_k_cache, A_v_cache, A_wq, A_wo)
    h = _layernorm(x, axis=-1) * (1 + cb) + sb
    x = x + gb * _B_ref(h, B_w_in, B_w_sp, B_b_sp, B_w_out)
    return x
```

```python
import re

def v(n, c=1):
    return f'v{n}' if c == 1 else f'v[{n}:{n+c-1}]'
def a(n, c=1):
    return f'a{n}' if c == 1 else f'a[{n}:{n+c-1}]'
def s(n, c=1):
    return f's{n}' if c == 1 else f's[{n}:{n+c-1}]'

class Asm:
    def __init__(self):
        self.L = []
    def __call__(self, *lines):
        for ln in lines:
            for x in ln.split('\n'):
                x = x.strip()
                if x:
                    self.L.append(x)
    def extend(self, lst):
        for x in lst:
            self(x)
    def text(self):
        out = []
        for x in self.L:
            if x.endswith(':') or x.startswith('.') or x.startswith(';'):
                out.append(x)
            else:
                out.append('  ' + x)
        return '\n'.join(out) + '\n'

TRANS = ('v_exp_f32', 'v_log_f32', 'v_rcp_f32', 'v_rsq_f32', 'v_sqrt_f32', 'v_sin_f32', 'v_cos_f32')

def cost(ins):
    if ins.endswith(':'): return 0
    op = ins.split()[0]
    if op.startswith('v_mfma'):
        return 8
    if op.startswith(TRANS):
        return 8
    return 4

def interleave(mfmas, fillers, first_gap=0, last_gap=None, lead=0):
    n = len(mfmas)
    if last_gap is None:
        last_gap = n - 1
    ng = last_gap - first_gap + 1
    def c(f):
        return sum(cost(x) for x in f) if isinstance(f, (list, tuple)) else cost(f)
    tot = sum(c(f) for f in fillers)
    out = []
    fi = 0
    acc = 0
    for i, m in enumerate(mfmas):
        out.append(m)
        if i < first_gap or i > last_gap:
            continue
        target = tot * (i - first_gap + 1) / ng
        while fi < len(fillers) and (acc + c(fillers[fi]) / 2 <= target or i == last_gap):
            f = fillers[fi]
            if isinstance(f, (list, tuple)):
                out.extend(f)
            else:
                out.append(f)
            acc += c(f)
            fi += 1
    assert fi == len(fillers)
    return out

_reg = re.compile(r'\b([vas])(\d+)\b|\b([vas])\[(\d+):(\d+)\]')
def regs_of(tok):
    r = set()
    for m in _reg.finditer(tok):
        if m.group(1):
            r.add((m.group(1), int(m.group(2))))
        else:
            for i in range(int(m.group(4)), int(m.group(5)) + 1):
                r.add((m.group(3), i))
    if re.search(r'\bvcc\b', tok):
        r.add(('s', 106)); r.add(('s', 107))
    if re.search(r'\bm0\b', tok):
        r.add(('s', 124))
    if re.search(r'\bexec\b', tok):
        r.add(('s', 126)); r.add(('s', 127))
    return r

def split_ops(ins):
    ins = ins.split(';')[0].strip()
    p = ins.split(None, 1)
    op = p[0]
    rest = p[1] if len(p) > 1 else ''
    ops = [x.strip() for x in re.split(r',(?![^\[]*\])', rest)] if rest else []
    return op, ops

def classify(ins):
    op, ops = split_ops(ins)
    d = dict(op=op, kind='other', w=set(), r=set(), c=set(), ab=set(), passes=0, store_data=set())
    if op.startswith('v_mfma'):
        d['kind'] = 'mfma'
        d['w'] = regs_of(ops[0]); d['ab'] = regs_of(ops[1]) | regs_of(ops[2]); d['c'] = regs_of(ops[3])
        d['r'] = d['ab'] | d['c']
        d['passes'] = 8 if '32x32x16' in op else 4
    elif op.startswith('v_'):
        d['kind'] = 'valu'
        if op.startswith('v_cmp'):
            d['w'] = regs_of(ops[0]); d['r'] = set().union(*[regs_of(x) for x in ops[1:]])
        elif op.startswith(('v_add_co', 'v_sub_co', 'v_addc_co', 'v_subb_co', 'v_div_scale', 'v_mad_u64')):
            d['w'] = regs_of(ops[0]) | regs_of(ops[1]); d['r'] = set().union(*[regs_of(x) for x in ops[2:]])
        elif op.startswith(('v_permlane32_swap', 'v_permlane16_swap', 'v_swap')):
            d['w'] = regs_of(ops[0]) | regs_of(ops[1]); d['r'] = set(d['w'])
        else:
            d['w'] = regs_of(ops[0]); d['r'] = set().union(set(), *[regs_of(x) for x in ops[1:]])
            if op.startswith(('v_fmac', 'v_mac', 'v_dot2c', 'v_pk_fmac', 'v_writelane')) or 'dpp' in ins or 'row_' in ins or 'quad_perm' in ins:
                d['r'] |= d['w']
            if op.startswith('v_cndmask') and len(ops) == 3:
                d['r'] |= {('s', 106), ('s', 107)}
        d['trans'] = op.startswith(TRANS)
        d['dpp'] = ('row_' in ins or 'quad_perm' in ins or 'wave_' in ins)
    elif op.startswith('ds_'):
        d['kind'] = 'ds'
        if op.startswith(('ds_read', 'ds_bpermute', 'ds_permute', 'ds_swizzle')):
            d['w'] = regs_of(ops[0]); d['r'] = set().union(*[regs_of(x.split()[0]) for x in ops[1:]])
        else:
            d['r'] = set().union(*[regs_of(x.split()[0]) for x in ops])
    elif op.startswith(('buffer_', 'global_')):
        d['kind'] = 'vmem'
        allr = set().union(set(), *[regs_of(x) for x in ops])
        if op in ('buffer_wbl2', 'buffer_inv'):
            pass
        elif ' lds' in ins or 'load_lds' in op:
            d['r'] = allr | {('s', 124)}; d['dma'] = True
        elif 'load' in op:
            d['w'] = regs_of(ops[0]); d['r'] = set().union(*[regs_of(x) for x in ops[1:]])
        else:
            d['r'] = allr
            if op.startswith('buffer_'):
                dat = regs_of(ops[0])
            else:
                dat = regs_of(ops[1])
            if 'atomic' in op and ' sc0' in ins:
                d['w'] = dat
            if 'x3' in op or 'x4' in op:
                d['store_data'] = dat
    elif op.startswith('s_'):
        d['kind'] = 'salu'
        if op in ('s_waitcnt', 's_barrier', 's_nop', 's_endpgm', 's_branch', 's_setprio', 's_sleep') or op.startswith(('s_cbranch',)):
            pass
        elif op.startswith('s_cmp') or op.startswith('s_bitcmp'):
            d['r'] = set().union(*[regs_of(x) for x in ops])
        else:
            d['w'] = regs_of(ops[0]) if ops else set(); d['r'] = set().union(set(), *[regs_of(x) for x in ops[1:]])
            if 'saveexec' in op:
                d['w'] |= {('s', 126), ('s', 127)}
    return d

def check_hazards(lines, name=''):
    ins = [x for x in lines if not (x.endswith(':') or x.startswith('.') or x.startswith(';'))]
    cl = [classify(x) for x in ins]
    pos = []
    p = 0
    for x, c in zip(ins, cl):
        pos.append(p)
        if c['op'] == 's_nop':
            p += int(x.split()[1], 0) + 1
        else:
            p += 1
    errs = []
    W = 24
    for j, cj in enumerate(cl):
        i = j - 1
        while i >= 0 and pos[j] - pos[i] <= W:
            ci = cl[i]
            dist = pos[j] - pos[i] - (int(ins[i].split()[1], 0) + 1 if ci['op'] == 's_nop' else 1)
            need = 0; why = ''
            def upd(n, w):
                nonlocal need, why
                if n > need:
                    need, why = n, w
            vw = {r for r in ci['w'] if r[0] in 'va'}
            sw = {r for r in ci['w'] if r[0] == 's'}
            if ci['kind'] == 'valu':
                if cj['kind'] == 'mfma' and vw & cj['r']: upd(2, 'VALU->MFMA')
                if cj['kind'] == 'valu':
                    if ci.get('trans') and not cj.get('trans') and vw & cj['r']: upd(1, 'trans->valu')
                    if cj['op'].startswith(('v_readlane', 'v_readfirstlane')) and vw & cj['r']: upd(1, 'valu->readlane')
                    if cj.get('dpp') and vw & cj['r']: upd(2, 'valu->dpp')
                    if cj['op'].startswith('v_permlane') and vw & cj['r']: upd(2, 'valu->permlane')
                    if sw & cj['r']:
                        upd(2, 'valu sgpr->valu')
                        if cj['op'].startswith(('v_readlane', 'v_writelane')): upd(4, 'valu sgpr->lane select')
                        if cj['op'].startswith('v_div_fmas'): upd(4, 'vcc->div_fmas')
                if cj['kind'] == 'vmem' and sw & cj['r']: upd(5, 'valu sgpr->vmem')
            if ci['kind'] == 'salu' and ('s', 124) in ci['w'] and cj.get('dma'): upd(1, 'm0->dma')
            if ci['kind'] == 'mfma':
                n8 = ci['passes'] == 8
                if cj['kind'] == 'mfma':
                    if ci['w'] & cj['ab']: upd(12 if n8 else 8, 'mfma D->A/B')
                    if ci['w'] & cj['c']:
                        if not (ci['w'] == cj['c'] and ci['passes'] == cj['passes']): upd(10 if n8 else 6, 'mfma D->C overlap')
                    elif ci['w'] & cj['w']: upd(12 if n8 else 8, 'mfma WAW')
                elif cj['kind'] in ('valu', 'ds', 'vmem'):
                    if ci['w'] & (cj['r'] | cj['w']): upd(12 if n8 else 8, 'mfma D->use')
                    if cj['kind'] == 'valu' and ci['c'] & cj['w']: upd(7 if n8 else 3, 'mfma C WAR')
            if ci['store_data'] and ci['store_data'] & cj['w']:
                upd(2 if cj['kind'] == 'valu' else 1, 'store data WAR')
            if dist < need:
                errs.append(f'{name}: [{why}] need {need} have {dist}: "{ins[i]}" -> "{ins[j]}"')
            i -= 1
    return errs
```

```python
from asmlib import *
import struct
def f2u(x):
    return struct.unpack('<I', struct.pack('<f', x))[0]
def hx(x):
    return hex(x & 0xffffffff)

KA = dict(x=0, K=8, V=16, wq=24, wo=32, Bx=40, w_in=48, w_sp=56, b_sp=64, w_out=72, c=80, w_mod=88, out=96, dbg=104, ws=112)
WS = dict(MOD=0x0, N1F=0x100000, VF=0x300000, X1F=0x400000, H2F=0x600000, Z1=0x800000, Z2R=0xC00000,
          Z2F=0x1000000, U=0x1400000, PART=0x2000000)
WSZ = dict(MOD=12288, N1F=0x200000, VF=0x100000, X1F=0x200000, H2F=0x200000, Z1=2048*896*2, Z2R=2048*896*2,
           Z2F=2048*896*2, U=2048*896*2, PART=0x1000000)
LOG2E = 1.4426950408889634

def kernel_head(A, name):
    A('.text', f'.globl {name}', '.p2align 8', f'.type {name},@function', f'{name}:')

def kernel_desc(name, vgpr, sgpr, accum):
    return '\n'.join(['.section .rodata,"a"', '.p2align 6', f'.amdhsa_kernel {name}',
        f'  .amdhsa_next_free_vgpr {vgpr}', f'  .amdhsa_next_free_sgpr {sgpr}', f'  .amdhsa_accum_offset {accum}',
        '  .amdhsa_group_segment_fixed_size 0', '  .amdhsa_kernarg_size 120', '  .amdhsa_user_sgpr_count 2',
        '  .amdhsa_user_sgpr_kernarg_segment_ptr 1', '  .amdhsa_system_sgpr_workgroup_id_x 1',
        '  .amdhsa_float_denorm_mode_32 3',
        '.end_amdhsa_kernel']) + '\n'

def srd(A, d, base, size, off=0, soff=None):
    if off == 0 and soff is None:
        A(f's_mov_b32 s{d}, s{base}', f's_mov_b32 s{d+1}, s{base+1}')
    else:
        if off:
            A(f's_add_u32 s{d}, s{base}, {hx(off)}', f's_addc_u32 s{d+1}, s{base+1}, 0')
            if soff is not None:
                A(f's_add_u32 s{d}, s{d}, {soff}', f's_addc_u32 s{d+1}, s{d+1}, 0')
        else:
            A(f's_add_u32 s{d}, s{base}, {soff}', f's_addc_u32 s{d+1}, s{base+1}, 0')
    if isinstance(size, int):
        A(f's_mov_b32 s{d+2}, {hx(size)}')
    else:
        A(f's_mov_b32 s{d+2}, {size}')
    A(f's_mov_b32 s{d+3}, 0x20000')

DPP = 'row_mask:0xf bank_mask:0xf'
def unpack8(src, dst, mask):
    r = []
    for i in range(4):
        r.append(f'v_lshlrev_b32 v{dst+2*i}, 16, v{src+i}')
        r.append(f'v_and_b32 v{dst+2*i+1}, {mask}, v{src+i}')
    return r
def rnd(d, x):
    return f'v_cvt_pk_bf16_f32 v{d}, 0, v{x}'
```

```python
import sys, importlib
sys.path.insert(0, 'gen')
from common import *
HEADER = open('adaLN_cond__sliding_block_cached__mixer_gmlp__prompt.s.ref').read().split('; Override launch')[0]
SC1 = int(os.environ.get('SC1', '0'))
def build(mods, out):
    infos = []; bodies = []
    nerr = 0
    for m in mods:
        mod = importlib.import_module(m)
        A = Asm()
        info = mod.gen(A)
        if SC1:
            A.L = [x + ' sc1' if x.startswith('buffer_store') and 'sc1' not in x and 's[96:99]' not in x else x for x in A.L]
        errs = check_hazards(A.L, info['name'])
        for e in errs[:20]: print('HAZARD', e)
        nerr += len(errs)
        infos.append(info); bodies.append(A.text())
    txt = HEADER
    for i in infos:
        txt += f"; @launch kernel={i['name']} grid=({i['grid']},1,1) block=({i['block']},1,1) lds={i['lds']}\n"
    txt += '.amdgcn_target "amdgcn-amd-amdhsa--gfx950"\n'
    for b in bodies: txt += b
    txt += 'CODE_END:\n'
    for i in infos: txt += kernel_desc(i['name'], i['vgpr'], i['sgpr'], i['accum'], i.get('extra', ()))
    open(out, 'w').write(txt)
    print('wrote', out, len(txt), 'bytes; hazards:', nerr)
if __name__ == '__main__':
    out = sys.argv[1] if len(sys.argv) > 1 else 'adaLN_cond__sliding_block_cached__mixer_gmlp__prompt.s'
    build(['k0', 'k1', 'k23', 'k4', 'k5'], out)
```

```python
from asmlib import *
import struct
def f2u(x):
    return struct.unpack('<I', struct.pack('<f', x))[0]
def hx(x):
    return hex(x & 0xffffffff)

KA = dict(x=0, K=8, V=16, wq=24, wo=32, Bx=40, w_in=48, w_sp=56, b_sp=64, w_out=72, c=80, w_mod=88, out=96, dbg=104, ws=112)
WS = dict(MOD=0x0, N1F=0x100000, VF=0x300000, X1F=0x400000, H2F=0x600000, Z1=0x800000, Z2R=0xC00000,
          Z2F=0x1000000, U=0x1400000, PART=0x2000000)
WSZ = dict(MOD=12288, N1F=0x200000, VF=0x100000, X1F=0x200000, H2F=0x200000, Z1=2048*896*2, Z2R=2048*896*2,
           Z2F=2048*896*2, U=2048*896*2, PART=0x1000000)
LOG2E = 1.4426950408889634

def kernel_head(A, name):
    A('.text', f'.globl {name}', '.p2align 8', f'.type {name},@function', f'{name}:')

def kernel_desc(name, vgpr, sgpr, accum):
    return '\n'.join(['.section .rodata,"a"', '.p2align 6', f'.amdhsa_kernel {name}',
        f'  .amdhsa_next_free_vgpr {vgpr}', f'  .amdhsa_next_free_sgpr {102 if STAMP else sgpr}', f'  .amdhsa_accum_offset {accum}',
        '  .amdhsa_group_segment_fixed_size 0', '  .amdhsa_kernarg_size 120', '  .amdhsa_user_sgpr_count 2',
        '  .amdhsa_user_sgpr_kernarg_segment_ptr 1', '  .amdhsa_system_sgpr_workgroup_id_x 1',
        '  .amdhsa_float_denorm_mode_32 3',
        '.end_amdhsa_kernel']) + '\n'

def srd(A, d, base, size, off=0, soff=None):
    if off == 0 and soff is None:
        A(f's_mov_b32 s{d}, s{base}', f's_mov_b32 s{d+1}, s{base+1}')
    else:
        if off:
            A(f's_add_u32 s{d}, s{base}, {hx(off)}', f's_addc_u32 s{d+1}, s{base+1}, 0')
            if soff is not None:
                A(f's_add_u32 s{d}, s{d}, {soff}', f's_addc_u32 s{d+1}, s{d+1}, 0')
        else:
            A(f's_add_u32 s{d}, s{base}, {soff}', f's_addc_u32 s{d+1}, s{base+1}, 0')
    if isinstance(size, int):
        A(f's_mov_b32 s{d+2}, {hx(size)}')
    else:
        A(f's_mov_b32 s{d+2}, {size}')
    A(f's_mov_b32 s{d+3}, 0x20000')

DPP = 'row_mask:0xf bank_mask:0xf'
def unpack8(src, dst, mask):
    r = []
    for i in range(4):
        r.append(f'v_lshlrev_b32 v{dst+2*i}, 16, v{src+i}')
        r.append(f'v_and_b32 v{dst+2*i+1}, {mask}, v{src+i}')
    return r
def rnd(d, x):
    return f'v_cvt_pk_bf16_f32 v{d}, 0, v{x}'

import os
STAMP = int(os.environ.get('STAMP', '0'))
WS['STAMP'] = 0x3000000
WSZ['STAMP'] = 8 * 1024 * 128
class Stamper:
    def __init__(self, A, kid, wsptr):
        self.A, self.kid, self.n, self.ws = A, kid, 0, wsptr
    def __call__(self, real=False):
        if not STAMP: return
        self.A(f's_memrealtime s[{64+2*self.n}:{65+2*self.n}]' if real else f's_memtime s[{64+2*self.n}:{65+2*self.n}]')
        self.n += 1
    def flush(self, v0ok=True):
        if not STAMP: return
        A = self.A
        A('s_waitcnt lgkmcnt(0) vmcnt(0)')
        A(f's_lshl_b32 s100, s2, 7', f's_add_u32 s100, s100, {hx(WS["STAMP"] + self.kid * 131072)}')
        A(f's_add_u32 s96, s{self.ws}, s100', f's_addc_u32 s97, s{self.ws+1}, 0', 's_mov_b32 s98, 128', 's_mov_b32 s99, 0x20000')
        A('v_cmp_eq_u32 vcc, 0, v0', 's_and_saveexec_b64 s[100:101], vcc', f's_cbranch_execz STAMP_END{self.kid}')
        A('v_mov_b32 v1, 0')
        for i in range(self.n):
            A(f'v_mov_b32 v2, s{64+2*i}', f'buffer_store_dword v2, v1, s[96:99], 0 offen offset:{4*i}', 's_nop 1')
        A(f'STAMP_END{self.kid}:')
```

```python
from asmlib import *
import struct
def f2u(x):
    return struct.unpack('<I', struct.pack('<f', x))[0]
def hx(x):
    return hex(x & 0xffffffff)

KA = dict(x=0, K=8, V=16, wq=24, wo=32, Bx=40, w_in=48, w_sp=56, b_sp=64, w_out=72, c=80, w_mod=88, out=96, dbg=104, ws=112)
WS = dict(MOD=0x0, MODQ=0x4000, STAT=0x10000, N1F=0x100000, VF=0x300000, X1F=0x400000, H2F=0x600000, Z1=0x800000, Z2R=0xC00000,
          Z2F=0x1000000, U=0x1400000, PART=0x2000000)
WSZ = dict(MOD=12288, MODQ=4096, STAT=16*7168, N1F=0x200000, VF=0x100000, X1F=0x200000, H2F=0x200000, Z1=2048*896*2, Z2R=2048*896*2,
           Z2F=2048*896*2, U=2048*896*2, PART=0x1000000)
LOG2E = 1.4426950408889634

def kernel_head(A, name):
    A('.text', f'.globl {name}', '.p2align 8', f'.type {name},@function', f'{name}:')

def kernel_desc(name, vgpr, sgpr, accum, extra=()):
    return '\n'.join(['.section .rodata,"a"', '.p2align 6', f'.amdhsa_kernel {name}',
        f'  .amdhsa_next_free_vgpr {vgpr}', f'  .amdhsa_next_free_sgpr {102 if STAMP else sgpr}', f'  .amdhsa_accum_offset {accum}',
        '  .amdhsa_group_segment_fixed_size 0', '  .amdhsa_kernarg_size 120', '  .amdhsa_user_sgpr_count 2',
        '  .amdhsa_user_sgpr_kernarg_segment_ptr 1', '  .amdhsa_system_sgpr_workgroup_id_x 1',
        '  .amdhsa_float_denorm_mode_32 3', *['  ' + x for x in extra],
        '.end_amdhsa_kernel']) + '\n'

def srd(A, d, base, size, off=0, soff=None):
    if off == 0 and soff is None:
        A(f's_mov_b32 s{d}, s{base}', f's_mov_b32 s{d+1}, s{base+1}')
    else:
        if off:
            A(f's_add_u32 s{d}, s{base}, {hx(off)}', f's_addc_u32 s{d+1}, s{base+1}, 0')
            if soff is not None:
                A(f's_add_u32 s{d}, s{d}, {soff}', f's_addc_u32 s{d+1}, s{d+1}, 0')
        else:
            A(f's_add_u32 s{d}, s{base}, {soff}', f's_addc_u32 s{d+1}, s{base+1}, 0')
    if isinstance(size, int):
        A(f's_mov_b32 s{d+2}, {hx(size)}')
    else:
        A(f's_mov_b32 s{d+2}, {size}')
    A(f's_mov_b32 s{d+3}, 0x20000')

DPP = 'row_mask:0xf bank_mask:0xf'
def unpack8(src, dst, mask):
    r = []
    for i in range(4):
        r.append(f'v_lshlrev_b32 v{dst+2*i}, 16, v{src+i}')
        r.append(f'v_and_b32 v{dst+2*i+1}, {mask}, v{src+i}')
    return r
def rnd(d, x):
    return f'v_cvt_pk_bf16_f32 v{d}, 0, v{x}'

import os
STAMP = int(os.environ.get('STAMP', '0'))
WS['STAMP'] = 0x3000000
WSZ['STAMP'] = 8 * 1024 * 128
class Stamper:
    def __init__(self, A, kid, wsptr):
        self.A, self.kid, self.n, self.ws = A, kid, 0, wsptr
    def __call__(self, real=False):
        if not STAMP: return
        self.A(f's_memrealtime s[{64+2*self.n}:{65+2*self.n}]' if (real or STAMP == 2) else f's_memtime s[{64+2*self.n}:{65+2*self.n}]')
        self.n += 1
    def flush(self, nowait=False):
        if not STAMP: return
        A = self.A
        A('s_waitcnt lgkmcnt(0)' if nowait else 's_waitcnt lgkmcnt(0) vmcnt(0)')
        A(f's_lshl_b32 s100, s2, 7', f's_add_u32 s100, s100, {hx(WS["STAMP"] + self.kid * 131072)}')
        A(f's_add_u32 s96, s{self.ws}, s100', f's_addc_u32 s97, s{self.ws+1}, 0', 's_mov_b32 s98, 128', 's_mov_b32 s99, 0x20000')
        A('v_cmp_eq_u32 vcc, 0, v0', 's_and_saveexec_b64 s[100:101], vcc', f's_cbranch_execz STAMP_END{self.kid}')
        A('v_mov_b32 v1, 0')
        for i in range(self.n):
            A(f'v_mov_b32 v2, s{64+2*i}', f'buffer_store_dword v2, v1, s[96:99], 0 offen offset:{4*i}', 's_nop 1')
        A(f'STAMP_END{self.kid}:')
```

```python
from asmlib import *
import struct
def f2u(x):
    return struct.unpack('<I', struct.pack('<f', x))[0]
def hx(x):
    return hex(x & 0xffffffff)

KA = dict(x=0, K=8, V=16, wq=24, wo=32, Bx=40, w_in=48, w_sp=56, b_sp=64, w_out=72, c=80, w_mod=88, out=96, dbg=104, ws=112)
WS = dict(MOD=0x0, MODQ=0x4000, STAT=0x10000, N1F=0x100000, VF=0x300000, X1F=0x400000, H2F=0x600000, Z1=0x800000, Z2R=0xC00000,
          Z2F=0x1000000, U=0x1400000, PART=0x2000000)
WSZ = dict(MOD=12288, MODQ=4096, STAT=16*7168 + 16384, N1F=0x200000, VF=0x100000, X1F=0x200000, H2F=0x200000, Z1=2048*896*2, Z2R=2048*896*2,
           Z2F=2048*896*2, U=2048*896*2, PART=0x1000000)
LOG2E = 1.4426950408889634

def kernel_head(A, name):
    A('.text', f'.globl {name}', '.p2align 8', f'.type {name},@function', f'{name}:')

def kernel_desc(name, vgpr, sgpr, accum, extra=()):
    return '\n'.join(['.section .rodata,"a"', '.p2align 6', f'.amdhsa_kernel {name}',
        f'  .amdhsa_next_free_vgpr {vgpr}', f'  .amdhsa_next_free_sgpr {102 if STAMP else sgpr}', f'  .amdhsa_accum_offset {accum}',
        '  .amdhsa_group_segment_fixed_size 0', '  .amdhsa_kernarg_size 120', '  .amdhsa_user_sgpr_count 2',
        '  .amdhsa_user_sgpr_kernarg_segment_ptr 1', '  .amdhsa_system_sgpr_workgroup_id_x 1',
        '  .amdhsa_float_denorm_mode_32 3', *['  ' + x for x in extra],
        '.end_amdhsa_kernel']) + '\n'

def srd(A, d, base, size, off=0, soff=None):
    if off == 0 and soff is None:
        A(f's_mov_b32 s{d}, s{base}', f's_mov_b32 s{d+1}, s{base+1}')
    else:
        if off:
            A(f's_add_u32 s{d}, s{base}, {hx(off)}', f's_addc_u32 s{d+1}, s{base+1}, 0')
            if soff is not None:
                A(f's_add_u32 s{d}, s{d}, {soff}', f's_addc_u32 s{d+1}, s{d+1}, 0')
        else:
            A(f's_add_u32 s{d}, s{base}, {soff}', f's_addc_u32 s{d+1}, s{base+1}, 0')
    if isinstance(size, int):
        A(f's_mov_b32 s{d+2}, {hx(size)}')
    else:
        A(f's_mov_b32 s{d+2}, {size}')
    A(f's_mov_b32 s{d+3}, 0x20000')

DPP = 'row_mask:0xf bank_mask:0xf'
def unpack8(src, dst, mask):
    r = []
    for i in range(4):
        r.append(f'v_lshlrev_b32 v{dst+2*i}, 16, v{src+i}')
        r.append(f'v_and_b32 v{dst+2*i+1}, {mask}, v{src+i}')
    return r
def rnd(d, x):
    return f'v_cvt_pk_bf16_f32 v{d}, 0, v{x}'

import os
STAMP = int(os.environ.get('STAMP', '0'))
WS['STAMP'] = 0x3000000
WSZ['STAMP'] = 8 * 1024 * 128
class Stamper:
    def __init__(self, A, kid, wsptr):
        self.A, self.kid, self.n, self.ws = A, kid, 0, wsptr
    def __call__(self, real=False):
        if not STAMP: return
        self.A(f's_memrealtime s[{64+2*self.n}:{65+2*self.n}]' if (real or STAMP == 2) else f's_memtime s[{64+2*self.n}:{65+2*self.n}]')
        self.n += 1
    def flush(self, nowait=False):
        if not STAMP: return
        A = self.A
        A('s_waitcnt lgkmcnt(0)' if nowait else 's_waitcnt lgkmcnt(0) vmcnt(0)')
        A(f's_lshl_b32 s100, s2, 7', f's_add_u32 s100, s100, {hx(WS["STAMP"] + self.kid * 131072)}')
        A(f's_add_u32 s96, s{self.ws}, s100', f's_addc_u32 s97, s{self.ws+1}, 0', 's_mov_b32 s98, 128', 's_mov_b32 s99, 0x20000')
        A('v_cmp_eq_u32 vcc, 0, v0', 's_and_saveexec_b64 s[100:101], vcc', f's_cbranch_execz STAMP_END{self.kid}')
        A('v_mov_b32 v1, 0')
        for i in range(self.n):
            A(f'v_mov_b32 v2, s{64+2*i}', f'buffer_store_dword v2, v1, s[96:99], 0 offen offset:{4*i}', 's_nop 1')
        A(f'STAMP_END{self.kid}:')

CODE_PF = int(os.environ.get('CODE_PF', '1'))
def code_pf(tag, d, first, s_idx, v_l16, dst):
    if not CODE_PF: return []
    return [[f's_getpc_b64 s[{d}:{d+1}]', f'{tag}:', f's_add_u32 s{d}, s{d}, {first}-{tag}', f's_addc_u32 s{d+1}, s{d+1}, 0',
             f's_mov_b32 s{d+2}, CODE_END-{first}', f's_mov_b32 s{d+3}, 0x20000'],
            f'buffer_load_dwordx4 {dst}, v{v_l16}, s[{d}:{d+3}], {s_idx} offen']
```
